```python
import torch

def _softmax(x, axis=-1):
    return torch.softmax(x, dim=axis)

def _gelu(x):
    return torch.nn.functional.gelu(x, approximate='tanh')

def _silu(x):
    return torch.nn.functional.silu(x)

def _sigmoid(x):
    return torch.sigmoid(x)

def _layernorm(x, axis=-1, eps=1e-05):
    m = x.mean(dim=axis, keepdim=True)
    v = x.var(dim=axis, keepdim=True, unbiased=False)
    return (x - m) / torch.sqrt(v + eps)

def _scatter_add(tgt, idx, src, axis=0):
    return tgt.clone().index_add_(axis, idx, src)

def _segment_sum(src, seg, n):
    out = torch.zeros((n,) + src.shape[1:], dtype=src.dtype)
    return out.index_add_(0, seg, src)

def _pad(x, pw):
    flat = tuple((v for pair in reversed(pw) for v in pair))
    return torch.nn.functional.pad(x, flat)
kernel_name = 'standalone__kv_cache_quant_pre_rope_vs_post_rope__prompt'

def setup_inputs():

    _w = lambda a: (lambda t: t.to(torch.bfloat16) if t.is_floating_point() else t)(torch.as_tensor(a))
    B, Sq, Skv = (1, 2048, 2048)
    H, Dh0 = (8, 128)
    G = -1 if -1 > 0 else Dh0
    G = max(2, G // 2 * 2)
    Dh = max(G, Dh0 // G * G)
    Skv = max(Skv, Sq)
    ng = Dh // G
    bits = 2 if 2 > 1 else 4
    bits = max(2, min(8, bits))
    qmax = (1 << bits) - 1
    half = Dh // 2
    inv = 1.0 / 10000.0 ** (torch.arange(half) / max(1, half))
    ang_k = torch.arange(Skv)[:, None] * inv[None, :]
    ang_q = torch.arange(Skv - Sq, Skv)[:, None] * inv[None, :]
    kc = torch.cat([torch.cos(ang_k), torch.cos(ang_k)], dim=-1)
    ks = torch.cat([torch.sin(ang_k), torch.sin(ang_k)], dim=-1)
    qc = torch.cat([torch.cos(ang_q), torch.cos(ang_q)], dim=-1)
    qs = torch.cat([torch.sin(ang_q), torch.sin(ang_q)], dim=-1)
    qk_i = torch.randint(0, qmax + 1, (B, H, Skv, Dh)).to(torch.int32)
    qv_i = torch.randint(0, qmax + 1, (B, H, Skv, Dh)).to(torch.int32)
    ksc = torch.abs((lambda *s: torch.randn(*s, dtype=torch.bfloat16) * 0.4)(B, H, Skv, ng)) * 0.1 + 0.01
    kzp = torch.full((B, H, Skv, ng), qmax / 2.0)
    vsc = torch.abs((lambda *s: torch.randn(*s, dtype=torch.bfloat16) * 0.4)(B, H, Skv, ng)) * 0.1 + 0.01
    vzp = torch.full((B, H, Skv, ng), qmax / 2.0)
    return {'q': _w((lambda *s: torch.randn(*s, dtype=torch.bfloat16) * 6.4)(B, H, Sq, Dh) * 0.5), 'qk': _w(qk_i), 'k_scales': _w(ksc), 'k_zeros': _w(kzp), 'qv': _w(qv_i), 'v_scales': _w(vsc), 'v_zeros': _w(vzp), 'q_cos': _w(qc), 'q_sin': _w(qs), 'k_cos': _w(kc), 'k_sin': _w(ks)}

def reference(q, qk, k_scales, k_zeros, qv, v_scales, v_zeros, q_cos, q_sin, k_cos, k_sin):
    B, H, Sq, Dh = q.shape
    ng = k_scales.shape[-1]
    G = Dh // ng
    half = Dh // 2
    ks = (lambda x, n, axis: torch.repeat_interleave(x, n, dim=axis))(k_scales, G, axis=-1)
    kz = (lambda x, n, axis: torch.repeat_interleave(x, n, dim=axis))(k_zeros, G, axis=-1)
    k = ((lambda x, dt: x.to(dt))(qk, q.dtype) - kz) * ks
    vs = (lambda x, n, axis: torch.repeat_interleave(x, n, dim=axis))(v_scales, G, axis=-1)
    vz = (lambda x, n, axis: torch.repeat_interleave(x, n, dim=axis))(v_zeros, G, axis=-1)
    v = ((lambda x, dt: x.to(dt))(qv, q.dtype) - vz) * vs
    k1 = k[..., :half].clone()
    k2 = k[..., half:].clone()
    krh = torch.concatenate([-k2, k1], axis=-1)
    kr = k * k_cos[None, None, :, :] + krh * k_sin[None, None, :, :]
    q1 = q[..., :half].clone()
    q2 = q[..., half:].clone()
    qrh = torch.concatenate([-q2, q1], axis=-1)
    qr = q * q_cos[None, None, :, :] + qrh * q_sin[None, None, :, :]
    logits = torch.einsum('bhqd,bhkd->bhqk', qr, kr) * float(Dh) ** (-0.5)
    attn = _softmax(logits, axis=-1)
    out = torch.einsum('bhqk,bhkd->bhqd', attn, v)
    return out
```

```python
import re

REG_RE = re.compile(r'^(-|\|)?(abs\()?([vas])(?:(\d+)|\[(\d+):(\d+)\])\)?\|?$')


def regs_of(tok):
    tok = tok.strip()
    if tok in ('vcc',):
        return [('s', 106), ('s', 107)]
    if tok == 'exec':
        return [('s', 126), ('s', 127)]
    if tok == 'm0':
        return [('s', 124)]
    m = REG_RE.match(tok)
    if not m:
        return []
    f = m.group(3)
    if m.group(4) is not None:
        return [(f, int(m.group(4)))]
    return [(f, i) for i in range(int(m.group(5)), int(m.group(6)) + 1)]


def split_ops(s):
    ops, depth, cur = [], 0, ''
    for ch in s + ',':
        if ch in '[(':
            depth += 1
        elif ch in '])':
            depth -= 1
        if ch == ',' and depth == 0:
            ops.append(cur.strip())
            cur = ''
        else:
            cur += ch
    return [o for o in ops if o]


TRANS = ('v_exp_f32', 'v_log_f32', 'v_rcp_f32', 'v_rsq_f32', 'v_sqrt_f32', 'v_sin_f32', 'v_cos_f32')
NODST_S = ('s_cmp', 's_waitcnt', 's_cbranch', 's_branch', 's_nop', 's_barrier', 's_setprio', 's_endpgm',
           's_sleep', 's_setpc', 's_bitcmp')


class I:
    def __init__(self, text):
        self.text = text
        t = text.split(';')[0].strip()
        self.mn, _, rest = t.partition(' ')
        ops_full = split_ops(rest)
        self.mods = []
        ops = []
        for o in ops_full:
            parts = o.split()
            ops.append(parts[0])
            self.mods += parts[1:]
        self.ops = ops
        mn = self.mn
        self.kind = 'other'
        self.w = []
        self.r = []
        self.srcA = self.srcB = self.srcC = []
        R = [regs_of(o) for o in ops]
        flat = lambda l: [x for y in l for x in y]
        if mn.startswith('v_mfma'):
            self.kind = 'mfma'
            self.w = R[0]
            self.srcA, self.srcB, self.srcC = R[1], R[2], R[3]
            self.r = R[1] + R[2] + R[3]
            self.passes = 8 if '32x32x16' in mn else 4
        elif mn.startswith('buffer_load') or mn.startswith('global_load'):
            self.kind = 'vmem_load'
            if 'lds' in self.mods:
                self.r = flat(R)
            else:
                self.w = R[0]
                self.r = flat(R[1:])
        elif mn.startswith('buffer_store') or mn.startswith('global_store'):
            self.kind = 'vmem_store'
            self.r = flat(R)
            self.data = R[0] if mn.startswith('buffer') else R[1]
        elif mn.startswith('buffer_atomic') or mn.startswith('global_atomic'):
            self.kind = 'vmem_store'
            self.r = flat(R)
            self.data = R[0]
            if 'sc0' in self.mods:
                self.kind = 'vmem_load'
                self.w = R[0]
        elif mn.startswith('buffer_') :
            self.kind = 'vmem_store'
            self.data = []
        elif mn.startswith('ds_read') or mn.startswith('ds_bpermute') or mn.startswith('ds_swizzle'):
            self.kind = 'ds_load'
            self.w = R[0]
            self.r = flat(R[1:])
        elif mn.startswith('ds_'):
            self.kind = 'ds_store'
            self.r = flat(R)
        elif mn.startswith('s_load') or mn.startswith('s_memtime') or mn.startswith('s_memrealtime'):
            self.kind = 'smem'
            self.w = R[0]
            self.r = flat(R[1:])
        elif mn.startswith('v_permlane'):
            self.kind = 'valu'
            self.w = R[0] + R[1]
            self.r = R[0] + R[1]
        elif mn.startswith('v_'):
            self.kind = 'valu'
            self.w = R[0]
            self.r = flat(R[1:])
            if mn.startswith('v_fmac'):
                self.r += R[0]
            if mn.startswith('v_add_co') or mn.startswith('v_addc_co'):
                self.w = R[0] + R[1]
                self.r = flat(R[2:])
            if mn.startswith('v_cndmask') and len(ops) == 3:
                self.r += regs_of('vcc')
        elif mn.startswith('s_'):
            self.kind = 'salu'
            if not any(mn.startswith(p) for p in NODST_S):
                self.w = R[0] if R else []
                self.r = flat(R[1:])
            else:
                self.r = flat(R)
        self.trans = any(mn.startswith(t) for t in TRANS)
        self.ws = 1
        if mn == 's_nop':
            self.ws = int(ops[0], 0) + 1


def check_trace(lines, verbose=True):
    ins = [I(l) for l in lines if l.strip() and not l.strip().endswith(':') and not l.strip().startswith(';')
           and not l.strip().startswith('.')]
    probs = []
    pos = []
    p = 0
    for x in ins:
        pos.append(p)
        p += x.ws
    last_valu_w = {}
    last_trans_w = {}
    last_mfma_w = {}
    last_mfma_c = {}
    last_store_data = {}
    vm_q = []
    lg_q = []

    def dist(i, j):
        return pos[j] - pos[i] - ins[i].ws if ins[i].mn != 's_nop' else pos[j] - pos[i] - ins[i].ws

    def need(i, j, n, why):
        d = dist(i, j)
        if d < n:
            probs.append(f'HAZARD {why}: need {n} have {d}:\n   [{i}] {ins[i].text}\n   [{j}] {ins[j].text}')

    for j, x in enumerate(ins):
        if x.mn == 's_waitcnt':
            t = x.text
            m = re.search(r'vmcnt\((\d+)\)', t)
            if m:
                n = int(m.group(1))
                while len(vm_q) > n:
                    vm_q.pop(0)
            m = re.search(r'lgkmcnt\((\d+)\)', t)
            if m:
                n = int(m.group(1))
                if any(ins[k].kind == 'smem' for k, _ in lg_q) and n != 0:
                    probs.append(f'lgkmcnt({n}) with smem outstanding at [{j}]')
                while len(lg_q) > n:
                    lg_q.pop(0)
            continue
        touched = set(x.r) | set(x.w)
        for q, nm in ((vm_q, 'vm'), (lg_q, 'lgkm')):
            for k, rs in q:
                if rs & touched:
                    probs.append(f'UNWAITED {nm} load:\n   [{k}] {ins[k].text}\n   [{j}] {x.text}')
        if x.kind == 'mfma':
            for r in x.r:
                if r in last_valu_w:
                    need(last_valu_w[r], j, 2, 'valu->mfma')
            for r in x.srcA + x.srcB:
                if r in last_mfma_w:
                    k = last_mfma_w[r]
                    need(k, j, 12 if ins[k].passes == 8 else 8, 'mfma D->A/B')
            for r in x.srcC:
                if r in last_mfma_w:
                    k = last_mfma_w[r]
                    if ins[k].w == x.srcC and ins[k].passes == x.passes:
                        pass
                    else:
                        need(k, j, 10 if ins[k].passes == 8 else 6, 'mfma D->C overlap')
            for r in x.w:
                if r in last_mfma_w and r not in x.srcC:
                    k = last_mfma_w[r]
                    need(k, j, 10 if ins[k].passes == 8 else 6, 'mfma D WAW')
        else:
            if x.kind in ('valu', 'vmem_load', 'vmem_store', 'ds_load', 'ds_store'):
                for r in touched:
                    if r in last_mfma_w:
                        k = last_mfma_w[r]
                        need(k, j, 12 if ins[k].passes == 8 else 8, 'mfma D->valu/mem')
            if x.kind == 'valu':
                for r in x.w:
                    if r in last_mfma_c:
                        k = last_mfma_c[r]
                        need(k, j, 7 if ins[k].passes == 8 else 3, 'mfma C WAR')
                    if r in last_store_data:
                        need(last_store_data[r], j, 2, 'store data WAR')
                if not x.trans:
                    for r in x.r:
                        if r in last_trans_w:
                            need(last_trans_w[r], j, 1, 'trans->valu')
                if x.mn.startswith('v_permlane') or 'dpp' in x.mn or any('row_' in m or 'quad_perm' in m for m in x.mods):
                    for r in x.r:
                        if r in last_valu_w:
                            need(last_valu_w[r], j, 2, 'valu->permlane/dpp')
                if x.mn.startswith('v_readfirstlane') or x.mn.startswith('v_readlane'):
                    for r in x.r:
                        if r in last_valu_w:
                            need(last_valu_w[r], j, 1, 'valu->readlane')
                for r in x.r:
                    if r[0] == 's' and r in last_valu_w:
                        need(last_valu_w[r], j, 2, 'valu sgpr->valu')
            if x.kind in ('vmem_load', 'vmem_store'):
                for r in x.r:
                    if r[0] == 's' and r in last_valu_w:
                        need(last_valu_w[r], j, 5, 'valu sgpr->vmem')
            if x.kind in ('vmem_store', 'ds_store', 'vmem_load', 'ds_load'):
                for r in x.r:
                    if r in last_trans_w:
                        need(last_trans_w[r], j, 1, 'trans->mem')
        if x.kind == 'valu':
            for r in x.w:
                last_valu_w[r] = j
                last_mfma_w.pop(r, None)
                if x.trans:
                    last_trans_w[r] = j
                else:
                    last_trans_w.pop(r, None)
        elif x.kind == 'mfma':
            for r in x.w:
                last_mfma_w[r] = j
                last_valu_w.pop(r, None)
                last_trans_w.pop(r, None)
            for r in x.srcC:
                last_mfma_c[r] = j
        elif x.kind == 'salu':
            for r in x.w:
                last_valu_w.pop(r, None)
        if x.kind == 'vmem_load':
            vm_q.append((j, set(x.w)))
            for r in x.w:
                last_valu_w.pop(r, None)
                last_trans_w.pop(r, None)
        elif x.kind == 'vmem_store':
            vm_q.append((j, set()))
            if 'x4' in x.mn or 'x3' in x.mn:
                for r in x.data:
                    last_store_data[r] = j
        elif x.kind in ('ds_load', 'smem'):
            lg_q.append((j, set(x.w)))
        elif x.kind == 'ds_store':
            lg_q.append((j, set()))
        if len(vm_q) > 63:
            probs.append(f'vmcnt overflow at [{j}]')
    return probs
```

```python
import sys
import struct
from asmlib import check_trace

NAME = 'standalone__kv_cache_quant_pre_rope_vs_post_rope__prompt'
HDR = open('cdna_kernels/%s.s.ref' % NAME).read().split('; Override launch')[0]

WS_Q = 8 << 20
WS_SIZE = 12 << 20
CSCALE = 1.4426950408889634 / (128.0 ** 0.5)


def f32hex(x):
    return '0x%08x' % struct.unpack('<I', struct.pack('<f', x))[0]


class Emit:
    def __init__(self):
        self.l = []

    def __call__(self, s):
        self.l.append('    ' + s)

    def label(self, s):
        self.l.append(s + ':')

    def c(self, s):
        self.l.append('    ; ' + s)


def srd(e, d, b, size):
    e(f's_mov_b32 s{d}, s{b}')
    e(f's_and_b32 s{d+1}, s{b+1}, 0xffff')
    e(f's_mov_b32 s{d+2}, 0x{size:x}')
    e(f's_mov_b32 s{d+3}, 0x20000')


def rnd_pair(e, a, b, t):
    e(f'v_cvt_pk_bf16_f32 v{t}, v{a}, v{b}')
    e(f'v_lshlrev_b32 v{a}, 16, v{t}')
    e(f'v_and_b32 v{b}, 0xffff0000, v{t}')


def unpack(e, src, lo, hi):
    e(f'v_lshlrev_b32 v{lo}, 16, v{src}')
    e(f'v_and_b32 v{hi}, 0xffff0000, v{src}')


def gen_prep():
    e = Emit()
    e.label('prep_kernel')
    e('s_cmp_ge_u32 s2, 2304')
    e('s_cbranch_scc1 L_prep_end')
    e('s_and_b32 s3, s2, 7')
    e('s_lshr_b32 s4, s2, 3')
    e('s_load_dwordx2 s[6:7], s[0:1], 104')
    e('s_cmp_lt_u32 s4, 32')
    e('s_cbranch_scc1 L_prep_v')
    e('s_cmp_lt_u32 s4, 160')
    e('s_cbranch_scc1 L_prep_k')
    e('s_load_dwordx2 s[8:9], s[0:1], 0')
    e('s_load_dwordx4 s[12:15], s[0:1], 56')
    e('s_sub_u32 s4, s4, 160')
    e('s_lshl_b32 s4, s4, 4')
    e('v_lshrrev_b32 v1, 7, v0')
    e('v_lshlrev_b32 v1, 3, v1')
    e('v_bfe_u32 v2, v0, 3, 3')
    e('v_add3_u32 v1, v1, v2, s4')
    e('v_bfe_u32 v2, v0, 6, 1')
    e('v_lshlrev_b32 v2, 3, v2')
    e('v_and_b32 v3, 7, v0')
    e('v_add_u32 v2, v2, v3')
    e('v_lshlrev_b32 v3, 8, v1')
    e('v_lshl_add_u32 v3, v2, 3, v3')
    e('s_lshl_b32 s5, s3, 19')
    e('v_add_u32 v4, s5, v3')
    e('v_lshrrev_b32 v5, 5, v1')
    e('v_lshlrev_b32 v5, 13, v5')
    e('v_lshrrev_b32 v6, 1, v2')
    e('v_lshl_add_u32 v5, v6, 10, v5')
    e('v_and_b32 v6, 1, v2')
    e('v_lshl_add_u32 v5, v6, 9, v5')
    e('v_and_b32 v6, 31, v1')
    e('v_lshl_add_u32 v5, v6, 4, v5')
    e(f's_add_u32 s5, s5, 0x{WS_Q:x}')
    e('v_add_u32 v5, s5, v5')
    e('s_waitcnt lgkmcnt(0)')
    srd(e, 16, 8, 4 << 20)
    srd(e, 20, 12, 512 << 10)
    srd(e, 24, 14, 512 << 10)
    srd(e, 28, 6, WS_SIZE)
    e('buffer_load_dwordx2 v[8:9], v4, s[16:19], 0 offen')
    e('buffer_load_dwordx2 v[10:11], v4, s[16:19], 0 offen offset:128')
    e('buffer_load_dwordx2 v[16:17], v3, s[20:23], 0 offen')
    e('buffer_load_dwordx2 v[18:19], v3, s[20:23], 0 offen offset:128')
    e('buffer_load_dwordx2 v[20:21], v3, s[24:27], 0 offen')
    e('buffer_load_dwordx2 v[22:23], v3, s[24:27], 0 offen offset:128')
    e(f's_mov_b32 s33, {f32hex(CSCALE)}')
    e('s_waitcnt vmcnt(4)')
    unpack(e, 8, 32, 33)
    unpack(e, 9, 34, 35)
    unpack(e, 10, 36, 37)
    unpack(e, 11, 38, 39)
    rope(e, True)
    e('buffer_store_dwordx4 v[64:67], v5, s[28:31], 0 offen')
    e('s_endpgm')
    e.label('L_prep_k')
    e('s_load_dwordx2 s[8:9], s[0:1], 8')
    e('s_load_dwordx4 s[36:39], s[0:1], 16')
    e('s_load_dwordx4 s[12:15], s[0:1], 72')
    e('s_sub_u32 s4, s4, 32')
    e('s_lshl_b32 s4, s4, 4')
    e('v_lshrrev_b32 v1, 7, v0')
    e('v_lshlrev_b32 v1, 3, v1')
    e('v_bfe_u32 v2, v0, 3, 3')
    e('v_add3_u32 v1, v1, v2, s4')
    e('v_bfe_u32 v2, v0, 6, 1')
    e('v_lshlrev_b32 v2, 3, v2')
    e('v_and_b32 v3, 7, v0')
    e('v_add_u32 v2, v2, v3')
    e('v_lshlrev_b32 v3, 8, v1')
    e('v_lshl_add_u32 v3, v2, 3, v3')
    e('s_lshl_b32 s5, s3, 20')
    e('v_lshlrev_b32 v4, 1, v3')
    e('v_add_u32 v4, s5, v4')
    e('s_lshl_b32 s34, s3, 12')
    e('v_lshlrev_b32 v7, 1, v1')
    e('v_add_u32 v7, s34, v7')
    e('v_lshrrev_b32 v5, 5, v1')
    e('v_lshlrev_b32 v5, 14, v5')
    e('v_lshrrev_b32 v6, 1, v2')
    e('v_lshl_add_u32 v5, v6, 10, v5')
    e('v_and_b32 v6, 1, v2')
    e('v_lshl_add_u32 v5, v6, 9, v5')
    e('v_and_b32 v6, 31, v1')
    e('v_lshl_add_u32 v5, v6, 4, v5')
    e('v_add_u32 v5, s5, v5')
    e('s_waitcnt lgkmcnt(0)')
    srd(e, 16, 8, 8 << 20)
    srd(e, 20, 12, 512 << 10)
    srd(e, 24, 14, 512 << 10)
    srd(e, 28, 6, WS_SIZE)
    srd(e, 40, 36, 32768)
    srd(e, 44, 38, 32768)
    e('buffer_load_dwordx4 v[32:35], v4, s[16:19], 0 offen')
    e('buffer_load_dwordx4 v[36:39], v4, s[16:19], 0 offen offset:256')
    e('buffer_load_ushort v24, v7, s[40:43], 0 offen')
    e('buffer_load_ushort v25, v7, s[44:47], 0 offen')
    e('buffer_load_dwordx2 v[16:17], v3, s[20:23], 0 offen')
    e('buffer_load_dwordx2 v[18:19], v3, s[20:23], 0 offen offset:128')
    e('buffer_load_dwordx2 v[20:21], v3, s[24:27], 0 offen')
    e('buffer_load_dwordx2 v[22:23], v3, s[24:27], 0 offen offset:128')
    e('s_waitcnt vmcnt(4)')
    e('v_lshlrev_b32 v24, 16, v24')
    e('v_lshlrev_b32 v25, 16, v25')
    for i in range(8):
        e(f'v_cvt_f32_i32 v{32+i}, v{32+i}')
    for i in range(0, 8, 2):
        rnd_pair(e, 32 + i, 33 + i, 26 + i // 2)
    for i in range(8):
        e(f'v_sub_f32 v{32+i}, v{32+i}, v25')
    for i in range(0, 8, 2):
        rnd_pair(e, 32 + i, 33 + i, 26 + i // 2)
    for i in range(8):
        e(f'v_mul_f32 v{32+i}, v{32+i}, v24')
    for i in range(0, 8, 2):
        rnd_pair(e, 32 + i, 33 + i, 26 + i // 2)
    rope(e, False)
    e('buffer_store_dwordx4 v[64:67], v5, s[28:31], 0 offen')
    e('s_endpgm')
    e.label('L_prep_v')
    e('s_load_dwordx2 s[8:9], s[0:1], 32')
    e('s_load_dwordx4 s[36:39], s[0:1], 40')
    e('v_lshrrev_b32 v1, 6, v0')
    e('s_lshl_b32 s4, s4, 2')
    e('v_add_u32 v1, s4, v1')
    e('v_bfe_u32 v2, v0, 5, 1')
    e('v_lshlrev_b32 v3, 4, v1')
    e('v_lshl_add_u32 v3, v2, 2, v3')
    e('s_lshl_b32 s5, s3, 20')
    e('v_lshlrev_b32 v4, 9, v3')
    e('v_and_b32 v6, 31, v0')
    e('v_lshl_add_u32 v4, v6, 4, v4')
    e('v_add_u32 v4, s5, v4')
    e('s_lshl_b32 s34, s3, 12')
    e('v_lshlrev_b32 v7, 1, v3')
    e('v_add_u32 v7, s34, v7')
    e('v_lshrrev_b32 v5, 1, v1')
    e('v_lshlrev_b32 v5, 14, v5')
    e('v_and_b32 v6, 1, v1')
    e('v_lshl_add_u32 v5, v6, 12, v5')
    e('v_and_b32 v6, 63, v0')
    e('v_lshl_add_u32 v5, v6, 4, v5')
    e('s_add_u32 s5, s5, 8192')
    e('v_add_u32 v5, s5, v5')
    e('s_mov_b32 s35, 4096')
    e('s_waitcnt lgkmcnt(0)')
    srd(e, 16, 8, 8 << 20)
    srd(e, 28, 6, WS_SIZE)
    srd(e, 40, 36, 32768)
    srd(e, 44, 38, 32768)
    e('buffer_load_dwordx2 v[8:9], v7, s[40:43], 0 offen')
    e('buffer_load_dwordx2 v[10:11], v7, s[40:43], 0 offen offset:16')
    e('buffer_load_dwordx2 v[12:13], v7, s[44:47], 0 offen')
    e('buffer_load_dwordx2 v[14:15], v7, s[44:47], 0 offen offset:16')
    for j in range(8):
        so = 's35' if j >= 4 else '0'
        e(f'buffer_load_dwordx4 v[{32+4*j}:{35+4*j}], v4, s[16:19], {so} offen offset:{(j&3)*512}')
    e('s_waitcnt vmcnt(8)')
    for i in range(4):
        unpack(e, 8 + i, 16 + 2 * i, 17 + 2 * i)
        unpack(e, 12 + i, 24 + 2 * i, 25 + 2 * i)
    for j in range(8):
        e(f's_waitcnt vmcnt({7-j})')
        b0 = 32 + 4 * j
        for i in range(4):
            e(f'v_cvt_f32_i32 v{b0+i}, v{b0+i}')
        rnd_pair(e, b0, b0 + 1, 8)
        rnd_pair(e, b0 + 2, b0 + 3, 9)
        for i in range(4):
            e(f'v_sub_f32 v{b0+i}, v{b0+i}, v{24+j}')
        rnd_pair(e, b0, b0 + 1, 8)
        rnd_pair(e, b0 + 2, b0 + 3, 9)
        for i in range(4):
            e(f'v_mul_f32 v{b0+i}, v{b0+i}, v{16+j}')
    for b in range(4):
        for p in range(4):
            e(f'v_cvt_pk_bf16_f32 v{64+4*b+p}, v{32+8*p+b}, v{36+8*p+b}')
        e(f'buffer_store_dwordx4 v[{64+4*b}:{67+4*b}], v5, s[28:31], 0 offen offset:{b*1024}')
    e.label('L_prep_end')
    e('s_endpgm')
    return e.l


def rope(e, is_q):
    e('s_waitcnt vmcnt(0)')
    for t in range(4):
        unpack(e, 16 + 2 * t, 40 + 4 * t, 41 + 4 * t)
        unpack(e, 17 + 2 * t, 42 + 4 * t, 43 + 4 * t)
    for i in range(4):
        e(f'v_mul_f32 v{40+i}, v{32+i}, v{40+i}')
        e(f'v_mul_f32 v{44+i}, v{36+i}, v{44+i}')
        e(f'v_mul_f32 v{48+i}, v{36+i}, v{48+i}')
        e(f'v_mul_f32 v{52+i}, v{32+i}, v{52+i}')
    for i in range(0, 16, 2):
        rnd_pair(e, 40 + i, 41 + i, 56 + i // 2)
    for i in range(4):
        e(f'v_sub_f32 v{40+i}, v{40+i}, v{48+i}')
        e(f'v_add_f32 v{44+i}, v{44+i}, v{52+i}')
    if is_q:
        for i in range(0, 8, 2):
            rnd_pair(e, 40 + i, 41 + i, 56 + i // 2)
        for i in range(8):
            e(f'v_mul_f32 v{40+i}, s33, v{40+i}')
    for i in range(4):
        e(f'v_cvt_pk_bf16_f32 v{64+i}, v{40+2*i}, v{41+2*i}')


VQ = 64
VS = 128
VC = 160
VE = 192
VP = 224
VTS = 240
VL = 242
VM = 244
VT = 246
VOFF = 4
AO = 0
AK = 128
AV = 192
SWS = 8
SOUT = 12
S_W = 16
S_KOFF = 17
S_VOFF = 18
S_BASE = 19
S_TK = 20
S_TV = 21
S_CNT = 22
S_THR = 23
S_HEAD = 24
S_QB = 25
THRESH = 4096.0


def vr(b, n):
    return f'v[{b}:{b+n-1}]'


def ar(b, n):
    return f'a[{b}:{b+n-1}]'


def mfma_qk(X, kk, buf, first_c=None):
    d = vr(VS + X * 16, 16)
    if kk == 0:
        c = vr(VC + X * 16, 16) if first_c is None else first_c
    else:
        c = d
    return f'v_mfma_f32_32x32x16_bf16 {d}, {ar(AK+buf*32+kk*4, 4)}, {vr(VQ+X*32+kk*4, 4)}, {c}'


def mfma_pv(X, i, buf):
    g, b = i >> 2, i & 3
    d = ar(AO + (X * 4 + b) * 16, 16)
    return f'v_mfma_f32_32x32x16_bf16 {d}, {ar(AV+buf*32+i*4, 4)}, {vr(VP+X*8+g*4, 4)}, {d}'


def load_k(i, buf):
    return (f'buffer_load_dwordx4 {ar(AK+buf*32+i*4, 4)}, v{VOFF+(i>>2)}, s[{SWS}:{SWS+3}], s{S_KOFF} offen '
            f'offset:{(i&3)*1024}')


def load_v(i, buf):
    return (f'buffer_load_dwordx4 {ar(AV+buf*32+i*4, 4)}, v{VOFF+2+(i>>2)}, s[{SWS}:{SWS+3}], s{S_VOFF} offen '
            f'offset:{(i&3)*1024}')


def adv(st, so):
    return [f's_add_u32 s{st}, s{st}, 1',
            f's_and_b32 s{st}, s{st}, 15',
            f's_lshl_b32 s{so}, s{st}, 14',
            f's_add_u32 s{so}, s{so}, s{S_BASE}']


def sm_ops(X):
    S, E, P, ts = VS + X * 16, VE + X * 16, VP + X * 8, VTS + X
    ops = []
    ex = lambda i: (8, f'v_exp_f32 v{E+i}, v{S+i}')
    ad = lambda i: (4, f'v_add_f32 v{ts}, v{ts}, v{E+i}') if i > 1 else (4, f'v_add_f32 v{ts}, v{E}, v{E+1}')
    cv = lambda j: (4, f'v_cvt_pk_bf16_f32 v{P+j}, v{E+2*j}, v{E+2*j+1}')
    ops += [ex(0), ex(1), ex(2), ad(1)]
    for i in range(3, 16):
        ops.append(ex(i))
        ops.append(ad(i - 1))
        if i % 2 == 1 and (i - 3) // 2 < 4:
            ops.append(cv((i - 3) // 2))
    ops.append((4, 's_nop 0'))
    ops.append(ad(15))
    ops.append((4, f'v_cmp_lt_f32 vcc, s{S_THR}, v{ts}'))
    deferred = [cv(j) for j in range(4, 8)] + [(4, f'v_add_f32 v{VL+X}, v{VL+X}, v{ts}')]
    return ops, deferred


def spread(ops, ngaps):
    total = sum(c for c, _ in ops)
    out = [[] for _ in range(ngaps)]
    acc = 0
    for c, t in ops:
        g = min(ngaps - 1, int((acc + c / 2) * ngaps / total))
        out[g].append(t)
        acc += c
    return out


class LoadQ:
    def __init__(self):
        self.q = []

    def issue(self, tag):
        self.q.append(tag)

    def wait_for(self, tags):
        idx = max((i for i, t in enumerate(self.q) if t in tags), default=-1)
        n = len(self.q) - 1 - idx
        self.q = self.q[idx + 1:]
        return n if idx >= 0 else None


stub_id = [0]
stubs = []


def check_branch(X):
    k = stub_id[0]
    stub_id[0] += 1
    stubs.append((k, X))
    return [f's_cbranch_vccnz L_stub_{k}', f'L_ret_{k}:']


def gen_tile(e, lq, t, par, do_g1=True, do_g3=True, do_g4=True, loadk=True, loadv=True, groups=(1, 2, 3, 4),
             smB_first=True):
    nb = par ^ 1
    smA, defA = sm_ops(0)
    smB, defB = sm_ops(1)
    wA = spread(smA, 14)
    wB = spread(smB, 14)
    for G in groups:
        for i in range(8):
            pre = []
            if G == 1:
                m = mfma_qk(0, i, nb)
                if i in (0, 4):
                    n = lq.wait_for({('K', t + 1, j) for j in range(i, i + 4)})
                    if n is not None:
                        pre.append(f's_waitcnt vmcnt({n})')
                fill = list(wB[6 + i])
                if i == 7:
                    fill += check_branch(1)
            elif G == 2:
                m = mfma_pv(1, i, par)
                if i < 2:
                    fill = [t_ for _, t_ in defB[2 * i:2 * i + 2]] + ([defB[4][1]] if i == 1 else [])
                else:
                    fill = list(wA[i - 2]) if do_g1 else []
            elif G == 3:
                m = mfma_qk(1, i, nb)
                fill = list(wA[6 + i])
                if i == 7:
                    fill += check_branch(0)
            else:
                m = mfma_pv(0, i, nb)
                if i in (0, 4):
                    n = lq.wait_for({('V', t + 1, j) for j in range(i, i + 4)})
                    if n is not None:
                        pre.append(f's_waitcnt vmcnt({n})')
                if i < 2:
                    fill = [t_ for _, t_ in defA[2 * i:2 * i + 2]] + ([defA[4][1]] if i == 1 else [])
                else:
                    fill = list(wB[i - 2])
            ld = []
            if i % 2 == 0:
                j = ((G - 1) & 1) * 4 + i // 2
                if G <= 2 and loadk:
                    ld = [load_k(j, par)]
                    lq.issue(('K', t + 2, j))
                elif G > 2 and loadv:
                    ld = [load_v(j, par)]
                    lq.issue(('V', t + 2, j))
            sal = []
            if i == 7 and G == 2 and loadk:
                sal = adv(S_TK, S_KOFF)
            if i == 7 and G == 4 and loadv:
                sal = adv(S_TV, S_VOFF)
            for p in pre:
                e(p)
            e(m)
            for x in ld + sal + fill:
                if x.endswith(':'):
                    e.label(x[:-1])
                else:
                    e(x)


def gen_rare(e, X):
    S, E, P, ts, C = VS + X * 16, VE + X * 16, VP + X * 8, VTS + X, VC + X * 16
    t0, t1, t2 = VT, VT + 1, VT + 2
    e.label(f'L_rare_{X}')
    e('s_nop 7')
    e('s_nop 7')
    e(f'v_max3_f32 v{t0}, v{S}, v{S+1}, v{S+2}')
    for i in range(3, 15, 2):
        e(f'v_max3_f32 v{t0}, v{t0}, v{S+i}, v{S+i+1}')
    e(f'v_max_f32 v{t0}, v{t0}, v{S+15}')
    e(f'v_mov_b32 v{t1}, v{t0}')
    e('s_nop 1')
    e(f'v_permlane32_swap_b32 v{t0}, v{t1}')
    e('s_nop 1')
    e(f'v_max3_f32 v{t0}, v{t0}, v{t1}, 0')
    e(f'v_exp_f32 v{t1}, -v{t0}')
    e(f'v_add_f32 v{VM+X}, v{VM+X}, v{t0}')
    e(f'v_sub_f32 v{t2}, 0, v{VM+X}')
    for i in range(16):
        e(f'v_mov_b32 v{C+i}, v{t2}')
    e(f'v_mul_f32 v{VL+X}, v{VL+X}, v{t1}')
    for r in range(64):
        a = AO + X * 64 + r
        tt = VT + 3 + (r & 3)
        e(f'v_accvgpr_read_b32 v{tt}, a{a}')
        e(f'v_mul_f32 v{tt}, v{tt}, v{t1}')
        e(f'v_accvgpr_write_b32 a{a}, v{tt}')
    for i in range(16):
        e(f'v_sub_f32 v{S+i}, v{S+i}, v{t0}')
    for i in range(16):
        e(f'v_exp_f32 v{E+i}, v{S+i}')
    e('s_nop 0')
    e(f'v_add_f32 v{ts}, v{E}, v{E+1}')
    for i in range(2, 16):
        e(f'v_add_f32 v{ts}, v{ts}, v{E+i}')
    for j in range(4):
        e(f'v_cvt_pk_bf16_f32 v{P+j}, v{E+2*j}, v{E+2*j+1}')
    e('s_nop 3')
    e('s_setpc_b64 s[30:31]')


def first_max(e, X):
    S, C = VS + X * 16, VC + X * 16
    t0, t1 = VT, VT + 1
    e(f'v_max3_f32 v{t0}, v{S}, v{S+1}, v{S+2}')
    for i in range(3, 15, 2):
        e(f'v_max3_f32 v{t0}, v{t0}, v{S+i}, v{S+i+1}')
    e(f'v_max_f32 v{t0}, v{t0}, v{S+15}')
    e(f'v_mov_b32 v{t1}, v{t0}')
    e('s_nop 1')
    e(f'v_permlane32_swap_b32 v{t0}, v{t1}')
    e('s_nop 1')
    e(f'v_max_f32 v{VM+X}, v{t0}, v{t1}')
    e(f'v_sub_f32 v{t0}, 0, v{VM+X}')
    for i in range(16):
        e(f'v_add_f32 v{S+i}, v{S+i}, v{t0}')
    for i in range(16):
        e(f'v_mov_b32 v{C+i}, v{t0}')


LDS_ML = 128 << 10
LDS_TOTAL = LDS_ML + 2048


def gen_attn():
    e = Emit()
    trace = []
    e.label(NAME + '_kernel')
    e('s_cmp_ge_u32 s2, 256')
    e('s_cbranch_scc1 L_attn_end')
    e('s_load_dwordx2 s[4:5], s[0:1], 88')
    e('s_load_dwordx2 s[6:7], s[0:1], 104')
    e(f's_and_b32 s{S_HEAD}, s2, 7')
    e(f's_lshr_b32 s{S_QB}, s2, 3')
    e('v_lshrrev_b32 v1, 6, v0')
    e('v_and_b32 v2, 63, v0')
    e(f'v_readfirstlane_b32 s{S_W}, v1')
    e(f'v_lshlrev_b32 v{VOFF}, 4, v2')
    e(f'v_add_u32 v{VOFF+1}, 0x1000, v{VOFF}')
    e(f'v_add_u32 v{VOFF+2}, 0x2000, v{VOFF}')
    e(f'v_add_u32 v{VOFF+3}, 0x3000, v{VOFF}')
    e(f's_lshl_b32 s{S_BASE}, s{S_HEAD}, 20')
    e(f's_lshl_b32 s3, s{S_W}, 18')
    e(f's_add_u32 s{S_BASE}, s{S_BASE}, s3')
    e(f's_and_b32 s{S_TK}, s{S_QB}, 15')
    e(f's_mov_b32 s{S_TV}, s{S_TK}')
    e(f's_lshl_b32 s{S_KOFF}, s{S_TK}, 14')
    e(f's_add_u32 s{S_KOFF}, s{S_KOFF}, s{S_BASE}')
    e(f's_mov_b32 s{S_VOFF}, s{S_KOFF}')
    e(f's_lshl_b32 s26, s{S_HEAD}, 19')
    e(f's_lshl_b32 s3, s{S_QB}, 14')
    e('s_add_u32 s26, s26, s3')
    e(f's_add_u32 s26, s26, 0x{WS_Q:x}')
    e(f's_mov_b32 s{S_THR}, {f32hex(THRESH)}')
    e('s_waitcnt lgkmcnt(0)')
    srd(e, SWS, 6, WS_SIZE)
    srd(e, SOUT, 4, 4 << 20)
    lq = LoadQ()

    def load_q(X):
        for kk in range(8):
            f = X * 8 + kk
            e(f'buffer_load_dwordx4 {vr(VQ+X*32+kk*4, 4)}, v{VOFF+(f>>2)}, s[{SWS}:{SWS+3}], s26 offen '
              f'offset:{(f&3)*1024}')
            lq.issue(('Q', X, kk))

    load_q(0)
    for i in range(8):
        e(load_k(i, 0))
        lq.issue(('K', 0, i))
    for x in adv(S_TK, S_KOFF):
        e(x)
    load_q(1)
    for i in range(8):
        e(load_v(i, 0))
        lq.issue(('V', 0, i))
    for x in adv(S_TV, S_VOFF):
        e(x)
    for i in range(8):
        e(load_k(i, 1))
        lq.issue(('K', 1, i))
    for x in adv(S_TK, S_KOFF):
        e(x)
    for i in range(8):
        e(load_v(i, 1))
        lq.issue(('V', 1, i))
    for x in adv(S_TV, S_VOFF):
        e(x)
    for r in range(128):
        e(f'v_accvgpr_write_b32 a{r}, 0')
    e(f'v_mov_b32 v{VL}, 0')
    e(f'v_mov_b32 v{VL+1}, 0')
    n = lq.wait_for({('K', 0, 7)})
    e(f's_waitcnt vmcnt({n})')
    for kk in range(8):
        e(mfma_qk(0, kk, 0, first_c='0'))
    n = lq.wait_for({('Q', 1, 7)})
    e(f's_waitcnt vmcnt({n})')
    for kk in range(8):
        e(mfma_qk(1, kk, 0, first_c='0'))
    e('s_nop 3')
    first_max(e, 0)
    smA, defA = sm_ops(0)
    for _, x in smA:
        e(x)
    first_max(e, 1)
    gen_tile(e, lq, -1, 1, groups=(4,), loadk=False, loadv=False)
    e(f's_mov_b32 s{S_CNT}, 0')
    pro = list(e.l)
    qsave = list(lq.q)
    e.label('L_loop')
    start = len(e.l)
    gen_tile(e, lq, 0, 0)
    gen_tile(e, lq, 1, 1)
    q2 = [(a, b - 2, c) for a, b, c in lq.q]
    assert q2 == qsave, (q2, qsave)
    e(f's_add_u32 s{S_CNT}, s{S_CNT}, 1')
    e(f's_cmp_lt_u32 s{S_CNT}, 7')
    e('s_cbranch_scc1 L_loop')
    body = e.l[start:]
    tail_start = len(e.l)
    lq.q = [(a, b + 12, c) for a, b, c in lq.q]
    gen_tile(e, lq, 14, 0, loadk=False, loadv=False)
    smB, defB = sm_ops(1)
    wB = spread(smB, 14)
    for i in range(8):
        for x in wB[6 + i]:
            e(x)
    for x in check_branch(1):
        if x.endswith(':'):
            e.label(x[:-1])
        else:
            e(x)
    gen_tile(e, lq, 15, 1, do_g1=False, groups=(2,), loadk=False, loadv=False)
    for X in range(2):
        e(f'v_mov_b32 v{VT+X}, v{VL+X}')
    e('s_nop 1')
    for X in range(2):
        e(f'v_permlane32_swap_b32 v{VL+X}, v{VT+X}')
    e('s_nop 1')
    for X in range(2):
        e(f'v_add_f32 v{VL+X}, v{VL+X}, v{VT+X}')
    e('v_cmp_gt_u32 vcc, 32, v2')
    e('s_nop 1')
    e(f'v_cndmask_b32 v{VT+2}, v{VM+1}, v{VM}, vcc')
    e(f'v_cndmask_b32 v{VT+3}, v{VL+1}, v{VL}, vcc')
    e('v_lshlrev_b32 v8, 5, v2')
    e(f's_lshl_b32 s3, s{S_W}, 3')
    e(f's_add_u32 s3, s3, 0x{LDS_ML:x}')
    e('v_add_u32 v8, s3, v8')
    e(f'ds_write_b64 v8, v[{VT+2}:{VT+3}]')
    e(f's_lshl_b32 s3, s{S_W}, 15')
    e(f'v_add_u32 v9, s3, v{VOFF}')
    e('s_nop 7')
    for X in range(2):
        for b in range(4):
            for dst in range(4):
                a = AO + (X * 4 + b) * 16 + dst * 4
                e(f'ds_write_b128 v9, {ar(a, 4)} offset:{dst*8192 + (X*4+b)*1024}')
    e('s_waitcnt lgkmcnt(0)')
    e('s_barrier')
    e('v_and_b32 v10, 31, v2')
    e('v_lshlrev_b32 v10, 5, v10')
    e(f'v_add_u32 v10, 0x{LDS_ML:x}, v10')
    ML = 16
    for X in range(2):
        e(f'ds_read_b128 {vr(ML+X*8, 4)}, v10 offset:{X*1024}')
        e(f'ds_read_b128 {vr(ML+X*8+4, 4)}, v10 offset:{X*1024+16}')
    e(f's_lshl_b32 s3, s{S_W}, 13')
    e(f'v_add_u32 v11, s3, v{VOFF}')
    e('v_add_u32 v12, 0x10000, v11')
    OB = 64
    for X in range(2):
        for b in range(4):
            for src in range(4):
                base = 'v11' if src < 2 else 'v12'
                e(f'ds_read_b128 {vr(OB+((X*4+b)*4+src)*4, 4)}, {base} offset:{(src&1)*32768 + (X*4+b)*1024}')
            if X == 0 and b == 1:
                e('s_waitcnt lgkmcnt(8)')
                for Y in range(2):
                    m = [ML + Y * 8 + 2 * w for w in range(4)]
                    l = [x + 1 for x in m]
                    e(f'v_max3_f32 v32, v{m[0]}, v{m[1]}, v{m[2]}')
                    e(f'v_max_f32 v32, v32, v{m[3]}')
                    for w in range(4):
                        e(f'v_sub_f32 v{m[w]}, v{m[w]}, v32')
                    for w in range(4):
                        e(f'v_exp_f32 v{m[w]}, v{m[w]}')
                    e('s_nop 0')
                    e(f'v_mul_f32 v33, v{m[0]}, v{l[0]}')
                    for w in range(1, 4):
                        e(f'v_fmac_f32 v33, v{m[w]}, v{l[w]}')
                    e('v_rcp_f32 v33, v33')
                    e('s_nop 0')
                    for w in range(4):
                        e(f'v_mul_f32 v{m[w]}, v{m[w]}, v33')
    e('v_and_b32 v13, 31, v2')
    e('v_lshlrev_b32 v13, 8, v13')
    e('v_lshrrev_b32 v14, 5, v2')
    e('v_lshl_add_u32 v13, v14, 5, v13')
    e(f's_lshl_b32 s3, s{S_HEAD}, 19')
    e(f's_lshl_b32 s27, s{S_QB}, 14')
    e('s_add_u32 s3, s3, s27')
    e(f's_lshl_b32 s27, s{S_W}, 6')
    e('s_add_u32 s3, s3, s27')
    e('v_add_u32 v13, s3, v13')
    e('v_add_u32 v14, 0x2000, v13')
    for X in range(2):
        e(f's_waitcnt lgkmcnt({0 if X else 15})')
        if X == 0:
            pass
        R = 192 + X * 16
        for b in range(4):
            for rr in range(4):
                o = lambda src: OB + ((X * 4 + b) * 4 + src) * 4 + rr
                f = lambda src: ML + X * 8 + 2 * src
                e(f'v_mul_f32 v{R+b*4+rr}, v{o(0)}, v{f(0)}')
                for src in range(1, 4):
                    e(f'v_fmac_f32 v{R+b*4+rr}, v{o(src)}, v{f(src)}')
        PK = 224 + X * 8
        for rr in range(4):
            e(f'v_cvt_pk_bf16_f32 v{PK+2*rr}, v{R+rr}, v{R+4+rr}')
            e(f'v_cvt_pk_bf16_f32 v{PK+2*rr+1}, v{R+8+rr}, v{R+12+rr}')
        a = 'v13' if X == 0 else 'v14'
        e(f'buffer_store_dwordx4 {vr(PK, 4)}, {a}, s[{SOUT}:{SOUT+3}], 0 offen')
        e(f'buffer_store_dwordx4 {vr(PK+4, 4)}, {a}, s[{SOUT}:{SOUT+3}], 0 offen offset:16')
    e.label('L_attn_end')
    e('s_endpgm')
    tail = e.l[tail_start:]
    for k, X in stubs:
        e.label(f'L_stub_{k}')
        e(f's_call_b64 s[30:31], L_rare_{X}')
        e(f's_branch L_ret_{k}')
    r0 = len(e.l)
    gen_rare(e, 0)
    gen_rare(e, 1)
    trace = pro + body + body + tail
    return e.l, trace


def kd(name, vgpr, accum, sgpr):
    return f'''.p2align 6
.amdhsa_kernel {name}
  .amdhsa_next_free_vgpr {vgpr}
  .amdhsa_next_free_sgpr {sgpr}
  .amdhsa_accum_offset {accum}
  .amdhsa_group_segment_fixed_size 0
  .amdhsa_kernarg_size 112
  .amdhsa_user_sgpr_count 2
  .amdhsa_user_sgpr_kernarg_segment_ptr 1
  .amdhsa_system_sgpr_workgroup_id_x 1
  .amdhsa_float_denorm_mode_32 3
.end_amdhsa_kernel
'''


def main(out):
    prep = gen_prep()
    attn, trace = gen_attn()
    probs = check_trace(trace)
    for p in probs:
        print(p)
    txt = '\n'.join(prep)
    parts = txt.split('s_endpgm')
    for p in parts:
        for q in check_trace(p.split('\n')):
            print('PREP', q)
    s = HDR
    s += '; @launch kernel=prep_kernel grid=(2304,1,1) block=(256,1,1) lds=0\n'
    s += f'; @launch kernel={NAME}_kernel grid=(256,1,1) block=(256,1,1) lds={LDS_TOTAL}\n'
    s += '.amdgcn_target "amdgcn-amd-amdhsa--gfx950"\n.text\n'
    s += f'.globl {NAME}_kernel\n.p2align 8\n.type {NAME}_kernel,@function\n'
    s += '\n'.join(attn) + '\n'
    s += '.globl prep_kernel\n.p2align 8\n.type prep_kernel,@function\n'
    s += '\n'.join(prep) + '\n'
    s += '.section .rodata,"a"\n'
    s += kd(NAME + '_kernel', 512, 256, 48)
    s += kd('prep_kernel', 80, 80, 48)
    open(out, 'w').write(s)
    print('wrote', out, 'problems:', len(probs))


if __name__ == '__main__':
    main(sys.argv[1] if len(sys.argv) > 1 else 'cdna_kernels/%s.s' % NAME)
```

```python
import sys
import struct
from asmlib import check_trace

NAME = 'standalone__kv_cache_quant_pre_rope_vs_post_rope__prompt'
HDR = open('cdna_kernels/%s.s.ref' % NAME).read().split('; Override launch')[0]

WS_Q = 8 << 20
WS_SIZE = 12 << 20
CSCALE = 1.4426950408889634 / (128.0 ** 0.5)


def f32hex(x):
    return '0x%08x' % struct.unpack('<I', struct.pack('<f', x))[0]


INSTR = False
OPT = set()
STAMP_OFF = 64 << 20


def stamp(e, idx):
    if not INSTR:
        return
    e(f's_memrealtime s[{64+4*idx}:{65+4*idx}]')
    e(f's_memtime s[{66+4*idx}:{67+4*idx}]')


def stamp_store(e, n, wsreg, base):
    if not INSTR:
        return
    e('s_waitcnt lgkmcnt(0)')
    e(f's_mov_b32 s56, s{wsreg}')
    e(f's_and_b32 s57, s{wsreg+1}, 0xffff')
    e('s_mov_b32 s58, 0x10000000')
    e('s_mov_b32 s59, 0x20000')
    e('s_lshl_b32 s60, s2, 2')
    e('s_add_u32 s60, s60, s61')
    e('s_lshl_b32 s60, s60, 6')
    e(f's_add_u32 s60, s60, 0x{base:x}')
    e('v_mov_b32 v60, s60')
    e('s_mov_b64 exec, 1')
    for i in range(n):
        e(f'v_mov_b32 v62, s{64+4*i}')
        e(f'v_mov_b32 v63, s{66+4*i}')
        e(f'buffer_store_dwordx2 v[62:63], v60, s[56:59], 0 offen offset:{8*i}')
        e('s_nop 1')


def stamp_init(e):
    if not INSTR:
        return
    e('v_lshrrev_b32 v60, 6, v0')
    e('s_nop 0')
    e('v_readfirstlane_b32 s61, v60')
    stamp(e, 0)


class Emit:
    def __init__(self):
        self.l = []

    def __call__(self, s):
        self.l.append('    ' + s)

    def label(self, s):
        self.l.append(s + ':')

    def c(self, s):
        self.l.append('    ; ' + s)


def srd(e, d, b, size):
    e(f's_mov_b32 s{d}, s{b}')
    e(f's_and_b32 s{d+1}, s{b+1}, 0xffff')
    e(f's_mov_b32 s{d+2}, 0x{size:x}')
    e(f's_mov_b32 s{d+3}, 0x20000')


def rnd_pair(e, a, b, t):
    e(f'v_cvt_pk_bf16_f32 v{t}, v{a}, v{b}')
    e(f'v_lshlrev_b32 v{a}, 16, v{t}')
    e(f'v_and_b32 v{b}, 0xffff0000, v{t}')


def unpack(e, src, lo, hi):
    e(f'v_lshlrev_b32 v{lo}, 16, v{src}')
    e(f'v_and_b32 v{hi}, 0xffff0000, v{src}')


def gen_prep():
    e = Emit()
    e.label('prep_kernel')
    e('s_cmp_ge_u32 s2, 2304')
    e('s_cbranch_scc1 L_prep_end')
    stamp_init(e)
    e('s_and_b32 s3, s2, 7')
    e('s_lshr_b32 s4, s2, 3')
    e('s_load_dwordx2 s[6:7], s[0:1], 104')
    e('s_cmp_lt_u32 s4, 32')
    e('s_cbranch_scc1 L_prep_v')
    e('s_cmp_lt_u32 s4, 160')
    e('s_cbranch_scc1 L_prep_k')
    e('s_load_dwordx2 s[8:9], s[0:1], 0')
    e('s_load_dwordx4 s[12:15], s[0:1], 56')
    e('s_sub_u32 s4, s4, 160')
    e('s_lshl_b32 s4, s4, 4')
    e('v_lshrrev_b32 v1, 7, v0')
    e('v_lshlrev_b32 v1, 3, v1')
    e('v_bfe_u32 v2, v0, 3, 3')
    e('v_add3_u32 v1, v1, v2, s4')
    e('v_bfe_u32 v2, v0, 6, 1')
    e('v_lshlrev_b32 v2, 3, v2')
    e('v_and_b32 v3, 7, v0')
    e('v_add_u32 v2, v2, v3')
    e('v_lshlrev_b32 v3, 8, v1')
    e('v_lshl_add_u32 v3, v2, 3, v3')
    e('s_lshl_b32 s5, s3, 19')
    e('v_add_u32 v4, s5, v3')
    e('v_lshrrev_b32 v5, 5, v1')
    e('v_lshlrev_b32 v5, 13, v5')
    e('v_lshrrev_b32 v6, 1, v2')
    e('v_lshl_add_u32 v5, v6, 10, v5')
    e('v_and_b32 v6, 1, v2')
    e('v_lshl_add_u32 v5, v6, 9, v5')
    e('v_and_b32 v6, 31, v1')
    e('v_lshl_add_u32 v5, v6, 4, v5')
    e(f's_add_u32 s5, s5, 0x{WS_Q:x}')
    e('v_add_u32 v5, s5, v5')
    e('s_waitcnt lgkmcnt(0)')
    srd(e, 16, 8, 4 << 20)
    srd(e, 20, 12, 512 << 10)
    srd(e, 24, 14, 512 << 10)
    srd(e, 28, 6, WS_SIZE)
    e('buffer_load_dwordx2 v[8:9], v4, s[16:19], 0 offen')
    e('buffer_load_dwordx2 v[10:11], v4, s[16:19], 0 offen offset:128')
    e('buffer_load_dwordx2 v[16:17], v3, s[20:23], 0 offen')
    e('buffer_load_dwordx2 v[18:19], v3, s[20:23], 0 offen offset:128')
    e('buffer_load_dwordx2 v[20:21], v3, s[24:27], 0 offen')
    e('buffer_load_dwordx2 v[22:23], v3, s[24:27], 0 offen offset:128')
    e(f's_mov_b32 s33, {f32hex(CSCALE)}')
    e('s_waitcnt vmcnt(4)')
    unpack(e, 8, 32, 33)
    unpack(e, 9, 34, 35)
    unpack(e, 10, 36, 37)
    unpack(e, 11, 38, 39)
    rope(e, True)
    stamp(e, 1)
    e('buffer_store_dwordx4 v[64:67], v5, s[28:31], 0 offen')
    if INSTR:
        e('s_waitcnt vmcnt(0)')
    stamp(e, 2)
    stamp_store(e, 3, 6, STAMP_OFF)
    e('s_endpgm')
    e.label('L_prep_k')
    e('s_load_dwordx2 s[8:9], s[0:1], 8')
    e('s_load_dwordx4 s[36:39], s[0:1], 16')
    e('s_load_dwordx4 s[12:15], s[0:1], 72')
    e('s_sub_u32 s4, s4, 32')
    e('s_lshl_b32 s4, s4, 4')
    e('v_lshrrev_b32 v1, 7, v0')
    e('v_lshlrev_b32 v1, 3, v1')
    e('v_bfe_u32 v2, v0, 3, 3')
    e('v_add3_u32 v1, v1, v2, s4')
    e('v_bfe_u32 v2, v0, 6, 1')
    e('v_lshlrev_b32 v2, 3, v2')
    e('v_and_b32 v3, 7, v0')
    e('v_add_u32 v2, v2, v3')
    e('v_lshlrev_b32 v3, 8, v1')
    e('v_lshl_add_u32 v3, v2, 3, v3')
    e('s_lshl_b32 s5, s3, 20')
    e('v_lshlrev_b32 v4, 1, v3')
    e('v_add_u32 v4, s5, v4')
    e('s_lshl_b32 s34, s3, 12')
    e('v_lshlrev_b32 v7, 1, v1')
    e('v_add_u32 v7, s34, v7')
    e('v_lshrrev_b32 v5, 5, v1')
    e('v_lshlrev_b32 v5, 14, v5')
    e('v_lshrrev_b32 v6, 1, v2')
    e('v_lshl_add_u32 v5, v6, 10, v5')
    e('v_and_b32 v6, 1, v2')
    e('v_lshl_add_u32 v5, v6, 9, v5')
    e('v_and_b32 v6, 31, v1')
    e('v_lshl_add_u32 v5, v6, 4, v5')
    e('v_add_u32 v5, s5, v5')
    e('s_waitcnt lgkmcnt(0)')
    srd(e, 16, 8, 8 << 20)
    srd(e, 20, 12, 512 << 10)
    srd(e, 24, 14, 512 << 10)
    srd(e, 28, 6, WS_SIZE)
    srd(e, 40, 36, 32768)
    srd(e, 44, 38, 32768)
    e('buffer_load_dwordx4 v[32:35], v4, s[16:19], 0 offen')
    e('buffer_load_dwordx4 v[36:39], v4, s[16:19], 0 offen offset:256')
    e('buffer_load_ushort v24, v7, s[40:43], 0 offen')
    e('buffer_load_ushort v25, v7, s[44:47], 0 offen')
    e('buffer_load_dwordx2 v[16:17], v3, s[20:23], 0 offen')
    e('buffer_load_dwordx2 v[18:19], v3, s[20:23], 0 offen offset:128')
    e('buffer_load_dwordx2 v[20:21], v3, s[24:27], 0 offen')
    e('buffer_load_dwordx2 v[22:23], v3, s[24:27], 0 offen offset:128')
    e('s_waitcnt vmcnt(4)')
    e('v_lshlrev_b32 v24, 16, v24')
    e('v_lshlrev_b32 v25, 16, v25')
    for i in range(8):
        e(f'v_cvt_f32_i32 v{32+i}, v{32+i}')
    for i in range(0, 8, 2):
        rnd_pair(e, 32 + i, 33 + i, 26 + i // 2)
    for i in range(8):
        e(f'v_sub_f32 v{32+i}, v{32+i}, v25')
    for i in range(0, 8, 2):
        rnd_pair(e, 32 + i, 33 + i, 26 + i // 2)
    for i in range(8):
        e(f'v_mul_f32 v{32+i}, v{32+i}, v24')
    for i in range(0, 8, 2):
        rnd_pair(e, 32 + i, 33 + i, 26 + i // 2)
    rope(e, False)
    stamp(e, 1)
    e('buffer_store_dwordx4 v[64:67], v5, s[28:31], 0 offen')
    if INSTR:
        e('s_waitcnt vmcnt(0)')
    stamp(e, 2)
    stamp_store(e, 3, 6, STAMP_OFF)
    e('s_endpgm')
    e.label('L_prep_v')
    e('s_load_dwordx2 s[8:9], s[0:1], 32')
    e('s_load_dwordx4 s[36:39], s[0:1], 40')
    e('v_lshrrev_b32 v1, 6, v0')
    e('s_lshl_b32 s4, s4, 2')
    e('v_add_u32 v1, s4, v1')
    e('v_bfe_u32 v2, v0, 5, 1')
    e('v_lshlrev_b32 v3, 4, v1')
    e('v_lshl_add_u32 v3, v2, 2, v3')
    e('s_lshl_b32 s5, s3, 20')
    e('v_lshlrev_b32 v4, 9, v3')
    e('v_and_b32 v6, 31, v0')
    e('v_lshl_add_u32 v4, v6, 4, v4')
    e('v_add_u32 v4, s5, v4')
    e('s_lshl_b32 s34, s3, 12')
    e('v_lshlrev_b32 v7, 1, v3')
    e('v_add_u32 v7, s34, v7')
    e('v_lshrrev_b32 v5, 1, v1')
    e('v_lshlrev_b32 v5, 14, v5')
    e('v_and_b32 v6, 1, v1')
    e('v_lshl_add_u32 v5, v6, 12, v5')
    e('v_and_b32 v6, 63, v0')
    e('v_lshl_add_u32 v5, v6, 4, v5')
    e('s_add_u32 s5, s5, 8192')
    e('v_add_u32 v5, s5, v5')
    e('s_mov_b32 s35, 4096')
    e('s_waitcnt lgkmcnt(0)')
    srd(e, 16, 8, 8 << 20)
    srd(e, 28, 6, WS_SIZE)
    srd(e, 40, 36, 32768)
    srd(e, 44, 38, 32768)
    e('buffer_load_dwordx2 v[8:9], v7, s[40:43], 0 offen')
    e('buffer_load_dwordx2 v[10:11], v7, s[40:43], 0 offen offset:16')
    e('buffer_load_dwordx2 v[12:13], v7, s[44:47], 0 offen')
    e('buffer_load_dwordx2 v[14:15], v7, s[44:47], 0 offen offset:16')
    for j in range(8):
        so = 's35' if j >= 4 else '0'
        e(f'buffer_load_dwordx4 v[{32+4*j}:{35+4*j}], v4, s[16:19], {so} offen offset:{(j&3)*512}')
    e('s_waitcnt vmcnt(8)')
    for i in range(4):
        unpack(e, 8 + i, 16 + 2 * i, 17 + 2 * i)
        unpack(e, 12 + i, 24 + 2 * i, 25 + 2 * i)
    for j in range(8):
        e(f's_waitcnt vmcnt({7-j})')
        b0 = 32 + 4 * j
        for i in range(4):
            e(f'v_cvt_f32_i32 v{b0+i}, v{b0+i}')
        rnd_pair(e, b0, b0 + 1, 8)
        rnd_pair(e, b0 + 2, b0 + 3, 9)
        for i in range(4):
            e(f'v_sub_f32 v{b0+i}, v{b0+i}, v{24+j}')
        rnd_pair(e, b0, b0 + 1, 8)
        rnd_pair(e, b0 + 2, b0 + 3, 9)
        for i in range(4):
            if 'vnoscale' not in OPT:
                e(f'v_mul_f32 v{b0+i}, v{b0+i}, v{16+j}')
    stamp(e, 1)
    for b in range(4):
        for p in range(4):
            e(f'v_cvt_pk_bf16_f32 v{64+4*b+p}, v{32+8*p+b}, v{36+8*p+b}')
        e(f'buffer_store_dwordx4 v[{64+4*b}:{67+4*b}], v5, s[28:31], 0 offen offset:{b*1024}')
    if INSTR:
        e('s_waitcnt vmcnt(0)')
    stamp(e, 2)
    stamp_store(e, 3, 6, STAMP_OFF)
    e.label('L_prep_end')
    e('s_endpgm')
    return e.l


def rope(e, is_q):
    e('s_waitcnt vmcnt(0)')
    for t in range(4):
        unpack(e, 16 + 2 * t, 40 + 4 * t, 41 + 4 * t)
        unpack(e, 17 + 2 * t, 42 + 4 * t, 43 + 4 * t)
    for i in range(4):
        e(f'v_mul_f32 v{40+i}, v{32+i}, v{40+i}')
        e(f'v_mul_f32 v{44+i}, v{36+i}, v{44+i}')
        e(f'v_mul_f32 v{48+i}, v{36+i}, v{48+i}')
        e(f'v_mul_f32 v{52+i}, v{32+i}, v{52+i}')
    for i in range(0, 16, 2):
        rnd_pair(e, 40 + i, 41 + i, 56 + i // 2)
    for i in range(4):
        e(f'v_sub_f32 v{40+i}, v{40+i}, v{48+i}')
        e(f'v_add_f32 v{44+i}, v{44+i}, v{52+i}')
    if is_q:
        for i in range(0, 8, 2):
            rnd_pair(e, 40 + i, 41 + i, 56 + i // 2)
        for i in range(8):
            e(f'v_mul_f32 v{40+i}, s33, v{40+i}')
    for i in range(4):
        e(f'v_cvt_pk_bf16_f32 v{64+i}, v{40+2*i}, v{41+2*i}')


VQ = 64
VS = 128
VC = 160
VE = 192
VP = 224
VTS = 240
VL = 242
VM = 244
VT = 246
VOFF = 4
AO = 0
AK = 128
AV = 192
SWS = 8
SOUT = 12
S_W = 16
S_KOFF = 17
S_VOFF = 18
S_BASE = 19
S_TK = 20
S_TV = 21
S_CNT = 22
S_THR = 23
S_HEAD = 24
S_QB = 25
THRESH = 4096.0


def vr(b, n):
    return f'v[{b}:{b+n-1}]'


def ar(b, n):
    return f'a[{b}:{b+n-1}]'


def mfma_qk(X, kk, buf, first_c=None):
    d = vr(VS + X * 16, 16)
    if kk == 0:
        c = vr(VC + X * 16, 16) if first_c is None else first_c
    else:
        c = d
    return f'v_mfma_f32_32x32x16_bf16 {d}, {ar(AK+buf*32+kk*4, 4)}, {vr(VQ+X*32+kk*4, 4)}, {c}'


def mfma_pv(X, i, buf):
    g, b = i >> 2, i & 3
    d = ar(AO + (X * 4 + b) * 16, 16)
    return f'v_mfma_f32_32x32x16_bf16 {d}, {ar(AV+buf*32+i*4, 4)}, {vr(VP+X*8+g*4, 4)}, {d}'


def load_k(i, buf):
    return (f'buffer_load_dwordx4 {ar(AK+buf*32+i*4, 4)}, v{VOFF+(i>>2)}, s[{SWS}:{SWS+3}], s{S_KOFF} offen '
            f'offset:{(i&3)*1024}')


def load_v(i, buf):
    return (f'buffer_load_dwordx4 {ar(AV+buf*32+i*4, 4)}, v{VOFF+2+(i>>2)}, s[{SWS}:{SWS+3}], s{S_VOFF} offen '
            f'offset:{(i&3)*1024}')


def adv(st, so):
    return [f's_add_u32 s{st}, s{st}, 1',
            f's_and_b32 s{st}, s{st}, 15',
            f's_lshl_b32 s{so}, s{st}, 14',
            f's_add_u32 s{so}, s{so}, s{S_BASE}']


def sm_ops(X):
    S, E, P, ts = VS + X * 16, VE + X * 16, VP + X * 8, VTS + X
    ops = []
    ex = lambda i: (8, f'v_exp_f32 v{E+i}, v{S+i}')
    ad = lambda i: (4, f'v_add_f32 v{ts}, v{ts}, v{E+i}') if i > 1 else (4, f'v_add_f32 v{ts}, v{E}, v{E+1}')
    cv = lambda j: (4, f'v_cvt_pk_bf16_f32 v{P+j}, v{E+2*j}, v{E+2*j+1}')
    ops += [ex(0), ex(1), ex(2), ad(1)]
    for i in range(3, 16):
        ops.append(ex(i))
        ops.append(ad(i - 1))
        if i % 2 == 1 and (i - 3) // 2 < 4:
            ops.append(cv((i - 3) // 2))
    ops.append((4, 's_nop 0'))
    ops.append(ad(15))
    ops.append((4, f'v_cmp_lt_f32 vcc, s{S_THR}, v{ts}'))
    deferred = [cv(j) for j in range(4, 8)] + [(4, f'v_add_f32 v{VL+X}, v{VL+X}, v{ts}')]
    return ops, deferred


def spread(ops, ngaps):
    total = sum(c for c, _ in ops)
    out = [[] for _ in range(ngaps)]
    acc = 0
    for c, t in ops:
        g = min(ngaps - 1, int((acc + c / 2) * ngaps / total))
        out[g].append(t)
        acc += c
    return out


class LoadQ:
    def __init__(self):
        self.q = []

    def issue(self, tag):
        self.q.append(tag)

    def wait_for(self, tags):
        idx = max((i for i, t in enumerate(self.q) if t in tags), default=-1)
        n = len(self.q) - 1 - idx
        self.q = self.q[idx + 1:]
        return n if idx >= 0 else None


stub_id = [0]
stubs = []


def check_branch(X):
    k = stub_id[0]
    stub_id[0] += 1
    stubs.append((k, X))
    return [f's_cbranch_vccnz L_stub_{k}', f'L_ret_{k}:']


def gen_tile(e, lq, t, par, do_g1=True, do_g3=True, do_g4=True, loadk=True, loadv=True, groups=(1, 2, 3, 4),
             smB_first=True):
    nb = par ^ 1
    smA, defA = sm_ops(0)
    smB, defB = sm_ops(1)
    wA = spread(smA, 14)
    wB = spread(smB, 14)
    for G in groups:
        for i in range(8):
            pre = []
            if G == 1:
                m = mfma_qk(0, i, nb)
                if i in (0, 4):
                    n = lq.wait_for({('K', t + 1, j) for j in range(i, i + 4)})
                    if n is not None:
                        pre.append(f's_waitcnt vmcnt({n})')
                fill = list(wB[6 + i])
                if i == 7:
                    fill += check_branch(1)
            elif G == 2:
                m = mfma_pv(1, i, par)
                if i < 2:
                    fill = [t_ for _, t_ in defB[2 * i:2 * i + 2]] + ([defB[4][1]] if i == 1 else [])
                else:
                    fill = list(wA[i - 2]) if do_g1 else []
            elif G == 3:
                m = mfma_qk(1, i, nb)
                fill = list(wA[6 + i])
                if i == 7:
                    fill += check_branch(0)
            else:
                m = mfma_pv(0, i, nb)
                if i in (0, 4):
                    n = lq.wait_for({('V', t + 1, j) for j in range(i, i + 4)})
                    if n is not None:
                        pre.append(f's_waitcnt vmcnt({n})')
                if i < 2:
                    fill = [t_ for _, t_ in defA[2 * i:2 * i + 2]] + ([defA[4][1]] if i == 1 else [])
                else:
                    fill = list(wB[i - 2])
            ld = []
            if i % 2 == 0 and 'noload' not in OPT:
                j = ((G - 1) & 1) * 4 + i // 2
                if G <= 2 and loadk:
                    ld = [load_k(j, par)]
                    lq.issue(('K', t + 2, j))
                elif G > 2 and loadv:
                    ld = [load_v(j, par)]
                    lq.issue(('V', t + 2, j))
            sal = []
            if i == 7 and G == 2 and loadk:
                sal = adv(S_TK, S_KOFF)
            if i == 7 and G == 4 and loadv:
                sal = adv(S_TV, S_VOFF)
            for p in pre:
                e(p)
            if 'fake16' in OPT and t >= 0:
                import re as _re
                mm_ = _re.match(r'v_mfma_f32_32x32x16_bf16 ([va])\[(\d+):\d+\], a\[(\d+):\d+\], (\S+), ([va])\[(\d+):\d+\]', m)
                f_, d_, a_, b_, cf_, c_ = mm_.groups()
                d_, a_, c_ = int(d_), int(a_), int(c_)
                e(f'v_mfma_f32_16x16x32_bf16 {f_}[{d_}:{d_+3}], a[{a_}:{a_+3}], {b_}, {cf_}[{c_}:{c_+3}]')
                half = len(fill) // 2
                if not any(x.endswith(':') or 'cbranch' in x for x in fill[:half]) and 'novalu' not in OPT:
                    for x in fill[:half]:
                        e(x)
                    fill = fill[half:]
                a2 = a_ ^ 4
                e(f'v_mfma_f32_16x16x32_bf16 {f_}[{d_+4}:{d_+7}], a[{a2}:{a2+3}], {b_}, {cf_}[{c_+4}:{c_+7}]')
            else:
                e(m)
            if 'novalu' in OPT and t >= 0:
                fill = [x for x in fill if not x.startswith('v_') or x.startswith('v_cmp')]
            if 'noexp' in OPT and t >= 0:
                fill = [x.replace('v_exp_f32', 'v_mov_b32') for x in fill]
            for x in ld + sal + fill:
                if x.endswith(':'):
                    e.label(x[:-1])
                else:
                    e(x)


def gen_rare(e, X):
    S, E, P, ts, C = VS + X * 16, VE + X * 16, VP + X * 8, VTS + X, VC + X * 16
    t0, t1, t2 = VT, VT + 1, VT + 2
    e.label(f'L_rare_{X}')
    e('s_nop 7')
    e('s_nop 7')
    e(f'v_max3_f32 v{t0}, v{S}, v{S+1}, v{S+2}')
    for i in range(3, 15, 2):
        e(f'v_max3_f32 v{t0}, v{t0}, v{S+i}, v{S+i+1}')
    e(f'v_max_f32 v{t0}, v{t0}, v{S+15}')
    e(f'v_mov_b32 v{t1}, v{t0}')
    e('s_nop 1')
    e(f'v_permlane32_swap_b32 v{t0}, v{t1}')
    e('s_nop 1')
    e(f'v_max3_f32 v{t0}, v{t0}, v{t1}, 0')
    e(f'v_exp_f32 v{t1}, -v{t0}')
    e(f'v_add_f32 v{VM+X}, v{VM+X}, v{t0}')
    e(f'v_sub_f32 v{t2}, 0, v{VM+X}')
    for i in range(16):
        e(f'v_mov_b32 v{C+i}, v{t2}')
    e(f'v_mul_f32 v{VL+X}, v{VL+X}, v{t1}')
    for r in range(64):
        a = AO + X * 64 + r
        tt = VT + 3 + (r & 3)
        e(f'v_accvgpr_read_b32 v{tt}, a{a}')
        e(f'v_mul_f32 v{tt}, v{tt}, v{t1}')
        e(f'v_accvgpr_write_b32 a{a}, v{tt}')
    for i in range(16):
        e(f'v_sub_f32 v{S+i}, v{S+i}, v{t0}')
    for i in range(16):
        e(f'v_exp_f32 v{E+i}, v{S+i}')
    e('s_nop 0')
    e(f'v_add_f32 v{ts}, v{E}, v{E+1}')
    for i in range(2, 16):
        e(f'v_add_f32 v{ts}, v{ts}, v{E+i}')
    for j in range(4):
        e(f'v_cvt_pk_bf16_f32 v{P+j}, v{E+2*j}, v{E+2*j+1}')
    e('s_nop 3')
    e('s_setpc_b64 s[30:31]')


def first_max(e, X):
    S, C = VS + X * 16, VC + X * 16
    t0, t1 = VT, VT + 1
    e(f'v_max3_f32 v{t0}, v{S}, v{S+1}, v{S+2}')
    for i in range(3, 15, 2):
        e(f'v_max3_f32 v{t0}, v{t0}, v{S+i}, v{S+i+1}')
    e(f'v_max_f32 v{t0}, v{t0}, v{S+15}')
    e(f'v_mov_b32 v{t1}, v{t0}')
    e('s_nop 1')
    e(f'v_permlane32_swap_b32 v{t0}, v{t1}')
    e('s_nop 1')
    e(f'v_max_f32 v{VM+X}, v{t0}, v{t1}')
    e(f'v_sub_f32 v{t0}, 0, v{VM+X}')
    for i in range(16):
        e(f'v_add_f32 v{S+i}, v{S+i}, v{t0}')
    for i in range(16):
        e(f'v_mov_b32 v{C+i}, v{t0}')


LDS_ML = 128 << 10
LDS_TOTAL = LDS_ML + 2048


def gen_attn():
    e = Emit()
    trace = []
    e.label(NAME + '_kernel')
    e('s_cmp_ge_u32 s2, 256')
    e('s_cbranch_scc1 L_attn_end')
    stamp_init(e)
    e('s_load_dwordx2 s[4:5], s[0:1], 88')
    e('s_load_dwordx2 s[6:7], s[0:1], 104')
    e(f's_and_b32 s{S_HEAD}, s2, 7')
    e(f's_lshr_b32 s{S_QB}, s2, 3')
    e('v_lshrrev_b32 v1, 6, v0')
    e('v_and_b32 v2, 63, v0')
    e(f'v_readfirstlane_b32 s{S_W}, v1')
    e(f'v_lshlrev_b32 v{VOFF}, 4, v2')
    e(f'v_add_u32 v{VOFF+1}, 0x1000, v{VOFF}')
    e(f'v_add_u32 v{VOFF+2}, 0x2000, v{VOFF}')
    e(f'v_add_u32 v{VOFF+3}, 0x3000, v{VOFF}')
    e(f's_lshl_b32 s{S_BASE}, s{S_HEAD}, 20')
    e(f's_lshl_b32 s3, s{S_W}, 18')
    e(f's_add_u32 s{S_BASE}, s{S_BASE}, s3')
    e(f's_and_b32 s{S_TK}, s{S_QB}, 15')
    e(f's_mov_b32 s{S_TV}, s{S_TK}')
    e(f's_lshl_b32 s{S_KOFF}, s{S_TK}, 14')
    e(f's_add_u32 s{S_KOFF}, s{S_KOFF}, s{S_BASE}')
    e(f's_mov_b32 s{S_VOFF}, s{S_KOFF}')
    e(f's_lshl_b32 s26, s{S_HEAD}, 19')
    e(f's_lshl_b32 s3, s{S_QB}, 14')
    e('s_add_u32 s26, s26, s3')
    e(f's_add_u32 s26, s26, 0x{WS_Q:x}')
    e(f's_mov_b32 s{S_THR}, {f32hex(THRESH)}')
    e('s_waitcnt lgkmcnt(0)')
    srd(e, SWS, 6, WS_SIZE)
    srd(e, SOUT, 4, 4 << 20)
    lq = LoadQ()

    def load_q(X):
        for kk in range(8):
            f = X * 8 + kk
            e(f'buffer_load_dwordx4 {vr(VQ+X*32+kk*4, 4)}, v{VOFF+(f>>2)}, s[{SWS}:{SWS+3}], s26 offen '
              f'offset:{(f&3)*1024}')
            lq.issue(('Q', X, kk))

    load_q(0)
    for i in range(8):
        e(load_k(i, 0))
        lq.issue(('K', 0, i))
    for x in adv(S_TK, S_KOFF):
        e(x)
    load_q(1)
    for i in range(8):
        e(load_v(i, 0))
        lq.issue(('V', 0, i))
    for x in adv(S_TV, S_VOFF):
        e(x)
    for i in range(8):
        e(load_k(i, 1))
        lq.issue(('K', 1, i))
    for x in adv(S_TK, S_KOFF):
        e(x)
    for i in range(8):
        e(load_v(i, 1))
        lq.issue(('V', 1, i))
    for x in adv(S_TV, S_VOFF):
        e(x)
    for r in range(128):
        e(f'v_accvgpr_write_b32 a{r}, 0')
    e(f'v_mov_b32 v{VL}, 0')
    e(f'v_mov_b32 v{VL+1}, 0')
    n = lq.wait_for({('K', 0, 7)})
    e(f's_waitcnt vmcnt({n})')
    stamp(e, 1)
    for kk in range(8):
        e(mfma_qk(0, kk, 0, first_c='0'))
    n = lq.wait_for({('Q', 1, 7)})
    e(f's_waitcnt vmcnt({n})')
    for kk in range(8):
        e(mfma_qk(1, kk, 0, first_c='0'))
    e('s_nop 3')
    first_max(e, 0)
    smA, defA = sm_ops(0)
    for _, x in smA:
        e(x)
    first_max(e, 1)
    gen_tile(e, lq, -1, 1, groups=(4,), loadk=False, loadv=False)
    e(f's_mov_b32 s{S_CNT}, 0')
    stamp(e, 2)
    pro = list(e.l)
    qsave = list(lq.q)
    e.label('L_loop')
    start = len(e.l)
    if 'unroll' in OPT:
        for tt in range(14):
            gen_tile(e, lq, tt, tt & 1)
        lq.q = [(a, b - 12, c) for a, b, c in lq.q]
    else:
        gen_tile(e, lq, 0, 0)
        gen_tile(e, lq, 1, 1)
        q2 = [(a, b - 2, c) for a, b, c in lq.q]
        assert q2 == qsave or 'noload' in OPT, (q2, qsave)
        e(f's_add_u32 s{S_CNT}, s{S_CNT}, 1')
        e(f's_cmp_lt_u32 s{S_CNT}, 7')
        e('s_cbranch_scc1 L_loop')
    body = e.l[start:]
    tail_start = len(e.l)
    lq.q = [(a, b + 12, c) for a, b, c in lq.q]
    stamp(e, 3)
    gen_tile(e, lq, 14, 0, loadk=False, loadv=False)
    smB, defB = sm_ops(1)
    wB = spread(smB, 14)
    for i in range(8):
        for x in wB[6 + i]:
            e(x)
    for x in check_branch(1):
        if x.endswith(':'):
            e.label(x[:-1])
        else:
            e(x)
    gen_tile(e, lq, 15, 1, do_g1=False, groups=(2,), loadk=False, loadv=False)
    stamp(e, 4)
    if INSTR:
        e('s_waitcnt lgkmcnt(0)')
    for X in range(2):
        e(f'v_mov_b32 v{VT+X}, v{VL+X}')
    e('s_nop 1')
    for X in range(2):
        e(f'v_permlane32_swap_b32 v{VL+X}, v{VT+X}')
    e('s_nop 1')
    for X in range(2):
        e(f'v_add_f32 v{VL+X}, v{VL+X}, v{VT+X}')
    e('v_cmp_gt_u32 vcc, 32, v2')
    e('s_nop 1')
    e(f'v_cndmask_b32 v{VT+2}, v{VM+1}, v{VM}, vcc')
    e(f'v_cndmask_b32 v{VT+3}, v{VL+1}, v{VL}, vcc')
    e('v_lshlrev_b32 v8, 5, v2')
    e(f's_lshl_b32 s3, s{S_W}, 3')
    e(f's_add_u32 s3, s3, 0x{LDS_ML:x}')
    e('v_add_u32 v8, s3, v8')
    e(f'ds_write_b64 v8, v[{VT+2}:{VT+3}]')
    e(f's_lshl_b32 s3, s{S_W}, 15')
    e(f'v_add_u32 v9, s3, v{VOFF}')
    e('s_nop 7')
    for X in range(2):
        for b in range(4):
            for dst in range(4):
                a = AO + (X * 4 + b) * 16 + dst * 4
                e(f'ds_write_b128 v9, {ar(a, 4)} offset:{dst*8192 + (X*4+b)*1024}')
    e('s_waitcnt lgkmcnt(0)')
    e('s_barrier')
    stamp(e, 5)
    if INSTR:
        e('s_waitcnt lgkmcnt(0)')
    e('v_and_b32 v10, 31, v2')
    e('v_lshlrev_b32 v10, 5, v10')
    e(f'v_add_u32 v10, 0x{LDS_ML:x}, v10')
    ML = 16
    for X in range(2):
        e(f'ds_read_b128 {vr(ML+X*8, 4)}, v10 offset:{X*1024}')
        e(f'ds_read_b128 {vr(ML+X*8+4, 4)}, v10 offset:{X*1024+16}')
    e(f's_lshl_b32 s3, s{S_W}, 13')
    e(f'v_add_u32 v11, s3, v{VOFF}')
    e('v_add_u32 v12, 0x10000, v11')
    OB = 64
    for X in range(2):
        for b in range(4):
            for src in range(4):
                base = 'v11' if src < 2 else 'v12'
                e(f'ds_read_b128 {vr(OB+((X*4+b)*4+src)*4, 4)}, {base} offset:{(src&1)*32768 + (X*4+b)*1024}')
            if X == 0 and b == 1:
                e('s_waitcnt lgkmcnt(8)')
                for Y in range(2):
                    m = [ML + Y * 8 + 2 * w for w in range(4)]
                    l = [x + 1 for x in m]
                    e(f'v_max3_f32 v32, v{m[0]}, v{m[1]}, v{m[2]}')
                    e(f'v_max_f32 v32, v32, v{m[3]}')
                    for w in range(4):
                        e(f'v_sub_f32 v{m[w]}, v{m[w]}, v32')
                    for w in range(4):
                        e(f'v_exp_f32 v{m[w]}, v{m[w]}')
                    e('s_nop 0')
                    e(f'v_mul_f32 v33, v{m[0]}, v{l[0]}')
                    for w in range(1, 4):
                        e(f'v_fmac_f32 v33, v{m[w]}, v{l[w]}')
                    e('v_rcp_f32 v33, v33')
                    e('s_nop 0')
                    for w in range(4):
                        e(f'v_mul_f32 v{m[w]}, v{m[w]}, v33')
    e('v_and_b32 v13, 31, v2')
    e('v_lshlrev_b32 v13, 8, v13')
    e('v_lshrrev_b32 v14, 5, v2')
    e('v_lshl_add_u32 v13, v14, 5, v13')
    e(f's_lshl_b32 s3, s{S_HEAD}, 19')
    e(f's_lshl_b32 s27, s{S_QB}, 14')
    e('s_add_u32 s3, s3, s27')
    e(f's_lshl_b32 s27, s{S_W}, 6')
    e('s_add_u32 s3, s3, s27')
    e('v_add_u32 v13, s3, v13')
    e('v_add_u32 v14, 0x2000, v13')
    for X in range(2):
        e(f's_waitcnt lgkmcnt({0 if X else 15})')
        if X == 0:
            pass
        R = 192 + X * 16
        for b in range(4):
            for rr in range(4):
                o = lambda src: OB + ((X * 4 + b) * 4 + src) * 4 + rr
                f = lambda src: ML + X * 8 + 2 * src
                e(f'v_mul_f32 v{R+b*4+rr}, v{o(0)}, v{f(0)}')
                for src in range(1, 4):
                    e(f'v_fmac_f32 v{R+b*4+rr}, v{o(src)}, v{f(src)}')
        PK = 224 + X * 8
        for rr in range(4):
            e(f'v_cvt_pk_bf16_f32 v{PK+2*rr}, v{R+rr}, v{R+4+rr}')
            e(f'v_cvt_pk_bf16_f32 v{PK+2*rr+1}, v{R+8+rr}, v{R+12+rr}')
        a = 'v13' if X == 0 else 'v14'
        e(f'buffer_store_dwordx4 {vr(PK, 4)}, {a}, s[{SOUT}:{SOUT+3}], 0 offen')
        e(f'buffer_store_dwordx4 {vr(PK+4, 4)}, {a}, s[{SOUT}:{SOUT+3}], 0 offen offset:16')
    stamp(e, 6)
    if INSTR:
        e('s_waitcnt vmcnt(0)')
    stamp(e, 7)
    stamp_store(e, 8, 6, STAMP_OFF + (1 << 20))
    e.label('L_attn_end')
    e('s_endpgm')
    tail = e.l[tail_start:]
    for k, X in stubs:
        e.label(f'L_stub_{k}')
        e(f's_call_b64 s[30:31], L_rare_{X}')
        e(f's_branch L_ret_{k}')
    r0 = len(e.l)
    gen_rare(e, 0)
    gen_rare(e, 1)
    trace = pro + body + ([] if 'unroll' in OPT else body) + tail
    return e.l, trace


def kd(name, vgpr, accum, sgpr):
    return f'''.p2align 6
.amdhsa_kernel {name}
  .amdhsa_next_free_vgpr {vgpr}
  .amdhsa_next_free_sgpr {sgpr}
  .amdhsa_accum_offset {accum}
  .amdhsa_group_segment_fixed_size 0
  .amdhsa_kernarg_size 112
  .amdhsa_user_sgpr_count 2
  .amdhsa_user_sgpr_kernarg_segment_ptr 1
  .amdhsa_system_sgpr_workgroup_id_x 1
  .amdhsa_float_denorm_mode_32 3
.end_amdhsa_kernel
'''


def main(out):
    prep = gen_prep()
    attn, trace = gen_attn()
    probs = check_trace(trace)
    for p in probs:
        print(p)
    txt = '\n'.join(prep)
    parts = txt.split('s_endpgm')
    for p in parts:
        for q in check_trace(p.split('\n')):
            print('PREP', q)
    s = HDR
    s += '; @launch kernel=prep_kernel grid=(2304,1,1) block=(256,1,1) lds=0\n'
    s += f'; @launch kernel={NAME}_kernel grid=(256,1,1) block=(256,1,1) lds={LDS_TOTAL}\n'
    s += '.amdgcn_target "amdgcn-amd-amdhsa--gfx950"\n.text\n'
    s += f'.globl {NAME}_kernel\n.p2align 8\n.type {NAME}_kernel,@function\n'
    s += '\n'.join(attn) + '\n'
    s += '.globl prep_kernel\n.p2align 8\n.type prep_kernel,@function\n'
    s += '\n'.join(prep) + '\n'
    s += '.section .rodata,"a"\n'
    s += kd(NAME + '_kernel', 512, 256, 100 if INSTR else 48)
    s += kd('prep_kernel', 80, 80, 100 if INSTR else 48)
    open(out, 'w').write(s)
    print('wrote', out, 'problems:', len(probs))


if __name__ == '__main__':
    for a in list(sys.argv):
        if a.startswith('+'):
            OPT.add(a[1:])
            sys.argv.remove(a)
    if '--instr' in sys.argv:
        INSTR = True
        sys.argv.remove('--instr')
    main(sys.argv[1] if len(sys.argv) > 1 else 'cdna_kernels/%s.s' % NAME)
```
